```python
import torch

def _softmax(x, axis=-1):
    return torch.softmax(x, dim=axis)
def _gelu(x):
    return torch.nn.functional.gelu(x, approximate="tanh")
def _silu(x):
    return torch.nn.functional.silu(x)
def _sigmoid(x):
    return torch.sigmoid(x)
def _layernorm(x, axis=-1, eps=1e-5):
    m = x.mean(dim=axis, keepdim=True)
    v = x.var(dim=axis, keepdim=True, unbiased=False)
    return (x - m) / torch.sqrt(v + eps)
def _scatter_add(tgt, idx, src, axis=0):
    return tgt.clone().index_add_(axis, idx, src)
def _segment_sum(src, seg, n):
    out = torch.zeros((n,) + src.shape[1:], dtype=src.dtype)
    return out.index_add_(0, seg, src)
def _pad(x, pw):
    flat = tuple(v for pair in reversed(pw) for v in pair)
    return torch.nn.functional.pad(x, flat)

kernel_name = 'concat_heads__mha_block_cached__gqa_block_cached__near_ridge'

def setup_inputs():

    _w = (lambda a: (lambda t: t.to(torch.bfloat16) if t.is_floating_point() else t)(torch.as_tensor(a)))
    def _A_setup():
        B, Sq, D = 8, 192, 640
        H, Sk, Dh = 32, 512, 192
        return {
            "x": _w((lambda *s: torch.randn(*s, dtype=torch.bfloat16) * 0.8)(B, Sq, D)),
            "k_cache": _w((lambda *s: torch.randn(*s, dtype=torch.bfloat16) * 0.8)(B, H, Sk, Dh)),
            "v_cache": _w((lambda *s: torch.randn(*s, dtype=torch.bfloat16) * 0.05)(B, H, Sk, Dh)),
            "wq": _w((lambda *s: torch.randn(*s, dtype=torch.bfloat16) * 0.8)(D, H * Dh) * (D ** -0.5)),
            "wo": _w((lambda *s: torch.randn(*s, dtype=torch.bfloat16) * 0.05)(H * Dh, D) * ((H * Dh) ** -0.5)),
        }
    _A_in = _A_setup()

    def _B_setup():
        B, Sq, D = 8, 192, 640
        Hq, Hkv, Sk, Dh = 32, 32, 512, 192
        assert Hq % Hkv == 0, (Hq, Hkv)
        return {
            "x": _w((lambda *s: torch.randn(*s, dtype=torch.bfloat16) * 0.8)(B, Sq, D)),
            "k_cache": _w((lambda *s: torch.randn(*s, dtype=torch.bfloat16) * 0.8)(B, Hkv, Sk, Dh)),
            "v_cache": _w((lambda *s: torch.randn(*s, dtype=torch.bfloat16) * 0.05)(B, Hkv, Sk, Dh)),
            "wq": _w((lambda *s: torch.randn(*s, dtype=torch.bfloat16) * 0.8)(D, Hq * Dh) * (D ** -0.5)),
            "wo": _w((lambda *s: torch.randn(*s, dtype=torch.bfloat16) * 0.05)(Hq * Dh, D) * ((Hq * Dh) ** -0.5)),
        }
    _B_in = _B_setup()

    return {
        "A_x": _A_in["x"],
        "A_k_cache": _A_in["k_cache"],
        "A_v_cache": _A_in["v_cache"],
        "A_wq": _A_in["wq"],
        "A_wo": _A_in["wo"],
        "B_x": _B_in["x"],
        "B_k_cache": _B_in["k_cache"],
        "B_v_cache": _B_in["v_cache"],
        "B_wq": _B_in["wq"],
        "B_wo": _B_in["wo"],
    }

def reference(A_x, A_k_cache, A_v_cache, A_wq, A_wo, B_x, B_k_cache, B_v_cache, B_wq, B_wo):
    def _A_ref(x, k_cache, v_cache, wq, wo):
        B, Sq, D = x.shape
        H, Dh = 32, 192
        q = (lambda x, *d: x.permute(*d))((x @ wq).reshape(B, Sq, H, Dh), 0, 2, 1, 3)
        scores = torch.einsum("bhqd,bhkd->bhqk", q, k_cache) * (Dh ** -0.5)
        p = _softmax(scores, axis=-1)
        o = torch.einsum("bhqk,bhkd->bhqd", p, v_cache)
        return (lambda x, *d: x.permute(*d))(o, 0, 2, 1, 3).reshape(B, Sq, H * Dh) @ wo

    def _B_ref(x, k_cache, v_cache, wq, wo):
        B, Sq, D = x.shape
        Hq, Dh = 32, 192
        Hkv = k_cache.shape[1]
        rep = Hq // Hkv
        q = (lambda x, *d: x.permute(*d))((x @ wq).reshape(B, Sq, Hq, Dh), 0, 2, 1, 3)
        k = (lambda x, n, axis: torch.repeat_interleave(x, n, dim=axis))(k_cache, rep, axis=1)
        v = (lambda x, n, axis: torch.repeat_interleave(x, n, dim=axis))(v_cache, rep, axis=1)
        scores = torch.einsum("bhqd,bhkd->bhqk", q, k) * (Dh ** -0.5)
        p = _softmax(scores, axis=-1)
        o = torch.einsum("bhqk,bhkd->bhqd", p, v)
        return (lambda x, *d: x.permute(*d))(o, 0, 2, 1, 3).reshape(B, Sq, Hq * Dh) @ wo

    a = _A_ref(A_x, A_k_cache, A_v_cache, A_wq, A_wo)
    b = _B_ref(B_x, B_k_cache, B_v_cache, B_wq, B_wo)
    return torch.concatenate([a, b], axis=-1)
```

```python
import re


def regs(kind, lo, n=1):
    return [f"{kind}{lo + i}" for i in range(n)]


def rr(kind, lo, n=1):
    return f"{kind}{lo}" if n == 1 else f"{kind}[{lo}:{lo + n - 1}]"


class I:
    __slots__ = ("t", "k", "r", "w", "tag", "lgk", "vmn", "cond", "srcC", "dead")

    def __init__(self, t, k, r=(), w=(), tag=None, cond=None, srcC=()):
        self.t = t
        self.k = k
        self.r = frozenset(r)
        self.w = frozenset(w)
        self.tag = tag
        self.lgk = None
        self.vmn = None
        self.cond = cond
        self.srcC = frozenset(srcC)
        self.dead = False

    def __repr__(self):
        return f"<{self.k}: {self.t}>"


VALU_KINDS = ("valu", "trans", "perm", "rfl")


def mfma(d, a, b, c, dk, ak, bk):
    cs = "0" if c is None else rr(dk, c, 4)
    rd = regs(ak, a, 4) + regs(bk, b, 4) + ([] if c is None else regs(dk, c, 4))
    return I(f"v_mfma_f32_16x16x32_bf16 {rr(dk, d, 4)}, {rr(ak, a, 4)}, {rr(bk, b, 4)}, {cs}", "mfma",
             rd, regs(dk, d, 4), srcC=([] if c is None else regs(dk, c, 4)))


def ds_read_b128(dk, d, addr, off, tag=None):
    return I(f"ds_read_b128 {rr(dk, d, 4)}, v{addr} offset:{off}", "dsr", [f"v{addr}"], regs(dk, d, 4), tag=tag)


def ds_read_tr(dk, d, addr, off, tag=None):
    return I(f"ds_read_b64_tr_b16 {rr(dk, d, 2)}, v{addr} offset:{off}", "dsr", [f"v{addr}"], regs(dk, d, 2), tag=tag)


def ds_write_b128(addr, sk, s, off):
    return I(f"ds_write_b128 v{addr}, {rr(sk, s, 4)} offset:{off}", "dsw", [f"v{addr}"] + regs(sk, s, 4), [])


def valu(t, r=(), w=()):
    return I(t, "valu", r, w)


def trans(t, r=(), w=()):
    return I(t, "trans", r, w)


def salu(t, r=(), w=()):
    return I(t, "salu", r, w)


def nop(n):
    return I(f"s_nop {n}", "nop", tag=n)


def label(name):
    return I(f"{name}:", "label")


def barrier(cond=None):
    return I("s_barrier", "bar", cond=cond)


def vmwait(need, cond=None):
    return I("s_waitcnt vmcnt(?)", "vmwait", tag=need, cond=cond)


class Group:
    def __init__(self, *ins):
        self.ins = list(ins)


def flat(x):
    out = []
    for e in x:
        if isinstance(e, Group):
            out += e.ins
        elif isinstance(e, (list, tuple)):
            out += flat(e)
        else:
            out.append(e)
    return out


def weave(backbone, fillers):
    slots = {}
    for seq, (pos, ins) in enumerate(fillers):
        import math
        b = math.floor(pos)
        b = min(b, len(backbone) - 1)
        slots.setdefault(b, []).append((pos, seq, ins))
    out = []
    for b in sorted(k for k in slots if k < 0):
        for _, _, ins in sorted(slots[b], key=lambda e: (e[0], e[1])):
            out += flat([ins])
    for i, m in enumerate(backbone):
        out.append(m)
        for _, _, ins in sorted(slots.get(i, []), key=lambda e: (e[0], e[1])):
            out += flat([ins])
    return out


class Program:
    def __init__(self):
        self.blocks = {}
        self.order = []
        self.trace = []

    def add(self, name, ins):
        assert name not in self.blocks
        self.blocks[name] = flat(ins)
        self.order.append(name)

    def dyn(self):
        for name, inst in self.trace:
            for ins in self.blocks[name]:
                if ins.cond is not None and not ins.cond(inst):
                    continue
                yield name, inst, ins

    def lgkm_pass(self):
        for b in self.blocks.values():
            for ins in b:
                ins.lgk = None
        for rnd in range(2):
            need = {}
            q = []
            for name, inst, ins in self.dyn():
                if rnd == 1 and ins.lgk is not None:
                    del q[: max(0, len(q) - ins.lgk)]
                if ins.k == "lgk0":
                    q = []
                    continue
                touch = ins.r | ins.w
                if ins.k in ("bar",) and ins.tag == "drain":
                    n = 0 if q else None
                else:
                    n = None
                    for i, wset in enumerate(q):
                        if wset and (wset & touch):
                            n = len(q) - i - 1
                if n is not None:
                    need[id(ins)] = min(need.get(id(ins), 99), n)
                    del q[: len(q) - n]
                if ins.k in ("dsr", "dsw"):
                    q.append(ins.w if ins.k == "dsr" else frozenset())
                    assert len(q) <= 15, f"lgkm overflow at {name}: {ins}"
            if rnd == 0:
                for b in self.blocks.values():
                    for ins in b:
                        ins.lgk = need.get(id(ins))
            else:
                for b in self.blocks.values():
                    for ins in b:
                        if id(ins) in need:
                            assert ins.lgk is not None and need[id(ins)] >= ins.lgk, (ins, need[id(ins)], ins.lgk)

    def lgkm_prune(self):
        changed = True
        while changed:
            changed = False
            binding = set()
            q = []
            for name, inst, ins in self.dyn():
                if ins.lgk is not None:
                    touch = ins.r | ins.w
                    k = max(0, len(q) - ins.lgk)
                    if any(ws and (ws & touch) for ws in q[:]) or (ins.k == "bar" and ins.tag == "drain" and q):
                        binding.add(id(ins))
                    del q[:k]
                if ins.k == "lgk0":
                    q = []
                    continue
                if ins.k in ("dsr", "dsw"):
                    q.append(ins.w if ins.k == "dsr" else frozenset())
            for b in self.blocks.values():
                for ins in b:
                    if ins.lgk is not None and id(ins) not in binding:
                        ins.lgk = None
                        changed = True

    def vm_pass(self, nslots, verbose=False, no_barrier=False):
        need = {}
        q = []
        tile = 0
        started = -1
        landed = -1
        ready = -1
        lastread = {}
        consumed_at = {}
        pos = 0
        bar_pos = []
        read_dest = []
        use_pos = {}
        pend = {}
        issue_pos = {}
        for name, inst, ins in self.dyn():
            pos += 1
            for r_ in ins.r:
                if r_ in pend:
                    idx = pend.pop(r_)
                    use_pos[idx] = pos
            if ins.k == "dsr" and ins.tag and ins.tag[0] == "rd":
                idx = ins.tag[1](inst)
                if idx is not None:
                    assert idx <= ready, f"read of tile {idx} before ready ({ready}) in {name} {inst}: {ins}"
                    assert started < idx + nslots, f"tile {idx} overwritten before read in {name} {inst} (tile={tile})"
                    for w_ in ins.w:
                        pend[w_] = idx
                    use_pos.setdefault(idx, pos)
                    use_pos[idx] = max(use_pos[idx], pos)
                else:
                    for w_ in ins.w:
                        pend.pop(w_, None)
            if ins.k == "dma":
                piece, npc = ins.tag[1], ins.tag[2]
                if piece == 0:
                    started = tile
                    old = tile - nslots
                    if old >= 0:
                        assert not any(v == old for v in pend.values()), f"tile {old} has unconsumed reads at DMA {tile} in {name} {inst}"
                        lb = pos if no_barrier else (bar_pos[-1] if bar_pos else -1)
                        assert use_pos.get(old, -1) < lb, f"DMA of tile {tile} reuses slot of {old} (last use {use_pos.get(old)}) after last barrier {lb} in {name} {inst}"
                q.append(tile)
                if piece == npc - 1:
                    tile += 1
            elif ins.k in ("vst", "vld"):
                q.append(None)
            elif ins.k == "vmwait":
                t = ins.tag(inst)
                if t == "all":
                    n = 0
                    landed = tile - 1
                else:
                    assert t < tile, f"wait for tile {t} not yet issued (tile={tile}) in {name} {inst}"
                    last = max((i for i, e in enumerate(q) if e is not None and e <= t), default=-1)
                    n = len(q) - 1 - last
                    landed = max(landed, t)
                n = min(n, 63)
                need[id(ins)] = min(need.get(id(ins), 99), n)
                if verbose:
                    print("vmwait", name, inst, "tile<=", t, "N=", n, "qlen", len(q))
                del q[: len(q) - n]
                if no_barrier:
                    ready = landed
            elif ins.k == "bar":
                ready = landed
                bar_pos.append(pos)
            assert len(q) <= 63 + 64, "vm queue too long"
        for b in self.blocks.values():
            for ins in b:
                if ins.k == "vmwait":
                    ins.vmn = need.get(id(ins), 0)
        return tile

    def hazard_check(self):
        hist = []
        errs = []

        def weight(ins):
            if ins.k == "label":
                return 0
            if ins.k == "nop":
                return ins.tag + 1
            return 1

        for name, inst, ins in self.dyn():
            if ins.k == "label":
                continue
            pre = 1 if ins.lgk is not None else 0
            d = pre
            for p in reversed(hist):
                if d > 20:
                    break
                req = self._req(p, ins)
                if req > d:
                    errs.append(f"HAZARD in {name}: '{p.t}' -> '{ins.t}' distance {d} < {req}")
                d += weight(p) + (1 if p.lgk is not None else 0)
            hist.append(ins)
            if len(hist) > 64:
                del hist[:32]
        uniq = sorted(set(errs))
        for e in uniq:
            print(e)
        assert not uniq, f"{len(uniq)} hazards"

    @staticmethod
    def _req(p, c):
        req = 0
        pv = p.k in VALU_KINDS
        cv = c.k in VALU_KINDS
        pw_v = {x for x in p.w if x[0] in "va" and x not in ("vcc",)}
        pw_s = {x for x in p.w if x[0] == "s" or x == "vcc"}
        if pv and c.k == "mfma" and (pw_v & c.r):
            req = max(req, 2)
        if p.k == "mfma":
            if c.k == "mfma":
                ab = c.r - c.srcC
                if p.w & ab:
                    req = max(req, 8)
                if (p.w & c.srcC) and (p.w != c.srcC):
                    req = max(req, 6)
                if (p.w & c.w) and not (p.w & c.srcC):
                    req = max(req, 6)
            elif cv or c.k in ("dsr", "dsw", "dma", "vst", "vld"):
                if p.w & (c.r | c.w):
                    req = max(req, 8)
            if cv and (p.srcC & c.w):
                req = max(req, 3)
        if p.k == "trans" and cv and c.k != "trans" and (p.w & c.r):
            req = max(req, 1)
        if p.k == "trans" and c.k == "trans" and (p.w & c.r):
            req = max(req, 1)
        if pv and c.k == "perm" and (pw_v & (c.r | c.w)):
            req = max(req, 2)
        if pv and c.k == "rfl" and (pw_v & c.r):
            req = max(req, 1)
        if pv and pw_s:
            if c.k in ("dma", "vst", "vld") and (pw_s & c.r):
                req = max(req, 5)
            if cv and (pw_s & c.r):
                req = max(req, 2)
            if c.k in ("salu", "br") and (pw_s & c.r):
                req = max(req, 4)
        if p.k == "salu" and "m0" in p.w and c.k == "dma":
            req = max(req, 1)
        if p.k == "vst" and cv and (p.r & c.w) and "x4" in p.t:
            req = max(req, 2)
        return req

    def text(self):
        out = []
        for b in self.blocks.values():
            for ins in b:
                m = re.search(r"offset:(\d+)", ins.t)
                if m:
                    lim = 4095 if ins.t.startswith("buffer") else 65535
                    assert int(m.group(1)) <= lim, ins.t
        for name in self.order:
            out.append(f"; ---- block {name}")
            for ins in self.blocks[name]:
                if ins.lgk is not None:
                    out.append(f"    s_waitcnt lgkmcnt({ins.lgk})")
                if ins.k == "vmwait":
                    out.append(f"    s_waitcnt vmcnt({ins.vmn})")
                elif ins.k == "label":
                    out.append(ins.t)
                else:
                    out.append("    " + ins.t)
        return "\n".join(out) + "\n"

    def stats(self):
        for name in self.order:
            c = {}
            for ins in self.blocks[name]:
                c[ins.k] = c.get(ins.k, 0) + 1
                if ins.lgk is not None:
                    c["lgkwait"] = c.get("lgkwait", 0) + 1
            print(f"{name:8s}", sum(c.values()), c)
```

```python
from fw import *

NSLOT = 13
SLOT = 12288
RING = NSLOT * SLOT
TPI = 72

S_A, S_B = 4, 8
S_X, S_W, S_K, S_V, S_O = 12, 16, 20, 24, 28
sOffA, sOffB, sStrA, sStrB = 32, 33, 34, 35
sPW, sLim, sT0, sT1 = 36, 37, 38, 39
sBK, sBV, sBW, sBX = 40, 41, 42, 43
sDK, sDV, sDW, sDX = 44, 45, 46, 47
sCnt, sItem, sWave, sOo = 48, 49, 50, 51
sP2, sM2 = 52, 53
sKVoff, sWnext = 54, 55

vLane16 = 1
vA, vB = 2, 5
vOX, vOW, vOK, vOV = 8, 11, 14, 17
aK, aV, aW, aX = 20, 22, 26, 30
vT = 32
QB = 112


def G(p, n):
    return QB + 8 * (p * 3 + n)


def hole(i):
    return QB + 8 * i + 4


def Qacc(mt, n):
    return G(mt >> 1, n) + 4 * (mt & 1)


def Qf(ks, n):
    return G(ks, n)


def Sreg(mt, n):
    return hole(mt * 3 + n)


def Preg(par, n):
    return hole(6 + par * 3 + n)


def NM(n):
    return hole(12 + n)


def Oacc(dt, n):
    return 4 * (dt * 3 + n)


aL = 144
aOnes = 156
aF = 160
RF = 6
aXB = 192


def Fr(f):
    return aF + 4 * (f % RF)


def XB(st, n):
    return aXB + 12 * st + 4 * n


QSCALE = 0.10411754


class K1:
    def __init__(self, nt_q="nt", nt_a="nt", D=4, dbg=None):
        self.nt_q = nt_q
        self.nt_a = nt_a
        self.D = D
        self.P = Program()
        self.dbg = dbg

    def adv(self, base, delta):
        return Group(
            salu(f"s_add_u32 s{sT1}, s{base}, s{sP2}", [f"s{base}"], [f"s{sT1}", "scc"]),
            salu(f"s_cmp_ge_u32 s{sT1}, {RING}", [f"s{sT1}"], ["scc"]),
            salu(f"s_cselect_b32 s{delta}, s{sM2}, s{sP2}", ["scc"], [f"s{delta}"]),
            salu(f"s_add_u32 s{base}, s{base}, s{delta}", [f"s{base}", f"s{delta}"], [f"s{base}", "scc"]),
        )

    def adv_n(self, base, delta, n):
        step = (n % NSLOT) * SLOT
        return [
            salu(f"s_add_u32 s{sT1}, s{base}, {step}", [f"s{base}"], [f"s{sT1}", "scc"]),
            salu(f"s_cmp_ge_u32 s{sT1}, {RING}", [f"s{sT1}"], ["scc"]),
            salu(f"s_cselect_b32 s{delta}, {RING}, 0", ["scc"], [f"s{delta}"]),
            salu(f"s_sub_u32 s{delta}, {step}, s{delta}", [f"s{delta}"], [f"s{delta}", "scc"]),
            salu(f"s_add_u32 s{base}, s{base}, s{delta}", [f"s{base}", f"s{delta}"], [f"s{base}", "scc"]),
        ]

    def vadd(self, reg, sdelta):
        return valu(f"v_add_u32 v{reg}, s{sdelta}, v{reg}", [f"v{reg}", f"s{sdelta}"], [f"v{reg}"])

    def dma_tile(self, stream, nt):
        srd, vo, off, st = (S_A, vA, sOffA, sStrA) if stream == "A" else (S_B, vB, sOffB, sStrB)
        head = Group(
            salu(f"s_mov_b32 m0, s{sPW}", [f"s{sPW}"], ["m0"]),
            salu(f"s_add_u32 s{sPW}, s{sPW}, {SLOT}", [f"s{sPW}"], [f"s{sPW}", "scc"]),
            salu(f"s_cmp_ge_u32 s{sPW}, s{sLim}", [f"s{sPW}", f"s{sLim}"], ["scc"]),
            salu(f"s_cselect_b32 s{sT0}, {RING}, 0", ["scc"], [f"s{sT0}"]),
            salu(f"s_sub_u32 s{sPW}, s{sPW}, s{sT0}", [f"s{sPW}", f"s{sT0}"], [f"s{sPW}", "scc"]),
        )
        pcs = []
        for j in range(3):
            o = f" offset:{j * 1024}" if j else ""
            pcs.append(I(f"buffer_load_dwordx4 v{vo + j}, s[{srd}:{srd + 3}], s{off} offen{o} {nt} lds".replace("  ", " "),
                         "dma", [f"v{vo + j}", "m0", f"s{off}"] + regs("s", srd, 4), [], tag=("dma", j, 3)))
        tail = salu(f"s_add_u32 s{off}, s{off}, s{st}", [f"s{off}", f"s{st}"], [f"s{off}", "scc"])
        return [head] + pcs + [tail]

    def dma_fill(self, streams, nt, lo, hi):
        items = []
        for s in streams:
            items += self.dma_tile(s, nt)
        out = []
        n = len(items)
        for i, it in enumerate(items):
            out.append((lo + (hi - lo) * i / n + 0.5, it))
        return out

    def set_stream_kv(self):
        ins = []
        for (dst, src) in ((S_A, S_K), (S_B, S_V)):
            ins.append(salu(f"s_mov_b64 s[{dst}:{dst + 1}], s[{src}:{src + 1}]", regs("s", src, 2), regs("s", dst, 2)))
            ins.append(salu(f"s_mov_b64 s[{dst + 2}:{dst + 3}], s[{src + 2}:{src + 3}]", regs("s", src + 2, 2), regs("s", dst + 2, 2)))
        ins.append(salu(f"s_mov_b32 s{sOffA}, s{sKVoff}", [f"s{sKVoff}"], [f"s{sOffA}"]))
        ins.append(salu(f"s_mov_b32 s{sOffB}, s{sKVoff}", [f"s{sKVoff}"], [f"s{sOffB}"]))
        ins.append(salu(f"s_mov_b32 s{sStrA}, {SLOT}", [], [f"s{sStrA}"]))
        ins.append(salu(f"s_mov_b32 s{sStrB}, {SLOT}", [], [f"s{sStrB}"]))
        for j in range(3):
            ins.append(valu(f"v_mov_b32 v{vA + j}, v{vOK + j}", [f"v{vOK + j}"], [f"v{vA + j}"]))
            ins.append(valu(f"v_mov_b32 v{vB + j}, v{vOV + j}", [f"v{vOV + j}"], [f"v{vB + j}"]))
        return ins

    def set_stream_xw(self):
        ins = []
        for (dst, src) in ((S_A, S_X), (S_B, S_W)):
            ins.append(salu(f"s_mov_b64 s[{dst}:{dst + 1}], s[{src}:{src + 1}]", regs("s", src, 2), regs("s", dst, 2)))
            ins.append(salu(f"s_mov_b64 s[{dst + 2}:{dst + 3}], s[{src + 2}:{src + 3}]", regs("s", src + 2, 2), regs("s", dst + 2, 2)))
        ins.append(salu(f"s_mov_b32 s{sOffA}, 0", [], [f"s{sOffA}"]))
        ins.append(salu(f"s_mov_b32 s{sOffB}, s{sWnext}", [f"s{sWnext}"], [f"s{sOffB}"]))
        ins.append(salu(f"s_mov_b32 s{sStrA}, 64", [], [f"s{sStrA}"]))
        ins.append(salu(f"s_mov_b32 s{sStrB}, {32 * 12288}", [], [f"s{sStrB}"]))
        for j in range(3):
            ins.append(valu(f"v_mov_b32 v{vA + j}, v{vOX + j}", [f"v{vOX + j}"], [f"v{vA + j}"]))
            ins.append(valu(f"v_mov_b32 v{vB + j}, v{vOW + j}", [f"v{vOW + j}"], [f"v{vB + j}"]))
        return ins

    def rdW(self, f, mt, idxfn):
        e = mt & 3
        base = (mt >> 2) * 128
        return [ds_read_tr("a", Fr(f), aW + e, base, tag=("rd", idxfn)),
                ds_read_tr("a", Fr(f) + 2, aW + e, base + 1536, tag=("rd", idxfn))]

    def rdV(self, f, dt, idxfn):
        e = dt & 3
        base = (dt >> 2) * 128
        return [ds_read_tr("a", Fr(f), aV + e, base, tag=("rd", idxfn)),
                ds_read_tr("a", Fr(f) + 2, aV + e, base + 6144, tag=("rd", idxfn))]

    def rdK(self, f, kf, idxfn):
        mt, ks = divmod(kf, 6)
        return [ds_read_b128("a", Fr(f), aK + (ks & 1), mt * 6144 + (ks >> 1) * 128, tag=("rd", idxfn))]

    def rdX(self, st, n, idxfn):
        return ds_read_b128("a", XB(st, n), aX, n * 1024, tag=("rd", idxfn))

    def init_block(self):
        s = []
        a = s.append
        a(salu("s_cmp_ge_u32 s2, 256", ["s2"], ["scc"]))
        a(I("s_cbranch_scc1 L_exit1", "br", ["scc"]))
        a(I("s_load_dwordx8 s[56:63], s[0:1], 0", "smem", [], regs("s", 56, 8)))
        a(I("s_load_dwordx8 s[64:71], s[0:1], 40", "smem", [], regs("s", 64, 8)))
        a(I("s_load_dwordx2 s[72:73], s[0:1], 96", "smem", [], regs("s", 72, 2)))
        a(valu("v_lshrrev_b32 v32, 6, v0", ["v0"], ["v32"]))
        a(valu(f"v_and_b32 v0, 63, v0", ["v0"], ["v0"]))
        a(I(f"v_readfirstlane_b32 s{sWave}, v32", "rfl", ["v32"], [f"s{sWave}"]))
        a(valu(f"v_lshlrev_b32 v{vLane16}, 4, v0", ["v0"], [f"v{vLane16}"]))
        a(salu("s_and_b32 s74, s2, 7", ["s2"], ["s74"]))
        a(salu("s_lshr_b32 s75, s2, 3", ["s2"], ["s75"]))
        a(salu("s_lshr_b32 s76, s74, 2", ["s74"], ["s76"]))
        a(salu("s_and_b32 s77, s74, 3", ["s74"], ["s77"]))
        a(salu("s_and_b32 s78, s75, 7", ["s75"], ["s78"]))
        a(salu("s_lshr_b32 s79, s75, 3", ["s75"], ["s79"]))
        a(salu("s_lshl_b32 s77, s77, 3", ["s77"], ["s77"]))
        a(salu("s_lshl_b32 s79, s79, 1", ["s79"], ["s79"]))
        a(salu("s_add_u32 s79, s79, s77", ["s79", "s77"], ["s79"]))
        a(I("s_waitcnt lgkmcnt(0)", "lgk0"))
        a(salu("s_cmp_eq_u32 s76, 0", ["s76"], ["scc"]))
        for j in range(0, 8, 2):
            a(salu(f"s_cselect_b64 s[{56 + j}:{57 + j}], s[{56 + j}:{57 + j}], s[{64 + j}:{65 + j}]", ["scc"], regs("s", 56 + j, 2)))
        a(salu("s_mul_i32 s80, s78, 245760", ["s78"], ["s80"]))
        a(salu(f"s_add_u32 s{S_X}, s56, s80", [], [f"s{S_X}", "scc"]))
        a(salu(f"s_addc_u32 s{S_X + 1}, s57, 0", ["scc"], [f"s{S_X + 1}"]))
        a(salu(f"s_mov_b32 s{S_X + 2}, 245760", [], [f"s{S_X + 2}"]))
        a(salu(f"s_mov_b32 s{S_X + 3}, 0x20000", [], [f"s{S_X + 3}"]))
        a(salu("s_lshl_b32 s80, s78, 5", ["s78"], ["s80"]))
        a(salu("s_add_u32 s80, s80, s79", ["s80", "s79"], ["s80"]))
        a(salu("s_mul_i32 s80, s80, 196608", ["s80"], ["s80"]))
        a(salu(f"s_add_u32 s{S_K}, s58, s80", [], [f"s{S_K}", "scc"]))
        a(salu(f"s_addc_u32 s{S_K + 1}, s59, 0", ["scc"], [f"s{S_K + 1}"]))
        a(salu(f"s_mov_b32 s{S_K + 2}, {2 * 196608}", [], [f"s{S_K + 2}"]))
        a(salu(f"s_mov_b32 s{S_K + 3}, 0x20000", [], [f"s{S_K + 3}"]))
        a(salu(f"s_add_u32 s{S_V}, s60, s80", [], [f"s{S_V}", "scc"]))
        a(salu(f"s_addc_u32 s{S_V + 1}, s61, 0", ["scc"], [f"s{S_V + 1}"]))
        a(salu(f"s_mov_b32 s{S_V + 2}, {2 * 196608}", [], [f"s{S_V + 2}"]))
        a(salu(f"s_mov_b32 s{S_V + 3}, 0x20000", [], [f"s{S_V + 3}"]))
        a(salu("s_mul_i32 s80, s79, 384", ["s79"], ["s80"]))
        a(salu(f"s_add_u32 s{S_W}, s62, s80", [], [f"s{S_W}", "scc"]))
        a(salu(f"s_addc_u32 s{S_W + 1}, s63, 0", ["scc"], [f"s{S_W + 1}"]))
        a(salu(f"s_sub_u32 s{S_W + 2}, {640 * 12288}, s80", ["s80"], [f"s{S_W + 2}"]))
        a(salu(f"s_mov_b32 s{S_W + 3}, 0x20000", [], [f"s{S_W + 3}"]))
        a(salu(f"s_mov_b32 s{S_O}, s72", [], [f"s{S_O}"]))
        a(salu(f"s_mov_b32 s{S_O + 1}, s73", [], [f"s{S_O + 1}"]))
        a(salu(f"s_mov_b32 s{S_O + 2}, {2 * 96 * 192 * 1024}", [], [f"s{S_O + 2}"]))
        a(salu(f"s_mov_b32 s{S_O + 3}, 0x20000", [], [f"s{S_O + 3}"]))
        a(salu("s_mul_i32 s80, s76, 96", ["s76"], ["s80"]))
        a(salu("s_mul_i32 s81, s78, 12", ["s78"], ["s81"]))
        a(salu("s_add_u32 s80, s80, s81", [], ["s80"]))
        a(salu(f"s_mul_i32 s81, s{sWave}, 3", [f"s{sWave}"], ["s81"]))
        a(salu("s_add_u32 s80, s80, s81", [], ["s80"]))
        a(salu("s_mul_i32 s80, s80, 192", [], ["s80"]))
        a(salu("s_mul_i32 s81, s79, 6", [], ["s81"]))
        a(salu("s_add_u32 s80, s80, s81", [], ["s80"]))
        a(salu(f"s_lshl_b32 s{sOo}, s80, 10", [], [f"s{sOo}"]))
        a(salu(f"s_mul_i32 s{sPW}, s{sWave}, 3072", [f"s{sWave}"], [f"s{sPW}"]))
        a(salu(f"s_add_u32 s{sLim}, s{sPW}, {RING}", [], [f"s{sLim}"]))
        a(salu(f"s_mov_b32 s{sP2}, {2 * SLOT}", [], [f"s{sP2}"]))
        a(salu(f"s_mov_b32 s{sM2}, {(2 * SLOT - RING) & 0xffffffff}", [], [f"s{sM2}"]))
        a(salu(f"s_mov_b32 s{sBX}, 0", [], [f"s{sBX}"]))
        a(salu(f"s_mov_b32 s{sBW}, {SLOT}", [], [f"s{sBW}"]))
        a(salu(f"s_mov_b32 s{sBK}, {(40 % NSLOT) * SLOT}", [], [f"s{sBK}"]))
        a(salu(f"s_mov_b32 s{sBV}, {(41 % NSLOT) * SLOT}", [], [f"s{sBV}"]))
        a(salu(f"s_mov_b32 s{sItem}, 0", [], [f"s{sItem}"]))
        a(salu(f"s_mov_b32 s{sKVoff}, 0", [], [f"s{sKVoff}"]))
        a(salu(f"s_mov_b32 s{sWnext}, 0", [], [f"s{sWnext}"]))

        def V(t, r, w):
            a(valu(t, r, w))

        a(salu(f"s_mul_i32 s80, s{sWave}, 192", [], ["s80"]))
        a(salu("s_movk_i32 s81, 2731", [], ["s81"]))
        a(salu("s_movk_i32 s82, 384", [], ["s82"]))
        a(salu("s_movk_i32 s83, 12288", [], ["s83"]))
        a(salu("s_movk_i32 s84, 1280", [], ["s84"]))
        for j in range(3):
            V(f"v_add_u32 v32, s80, v0", ["v0", "s80"], ["v32"])
            if j:
                V(f"v_add_u32 v32, {64 * j}, v32", ["v32"], ["v32"])
            V("v_mul_lo_u32 v33, v32, s81", ["v32", "s81"], ["v33"])
            V("v_lshrrev_b32 v33, 16, v33", ["v33"], ["v33"])
            V("v_mul_u32_u24 v34, 24, v33", ["v33"], ["v34"])
            V("v_sub_u32 v34, v32, v34", ["v32", "v34"], ["v34"])
            V("v_lshrrev_b32 v35, 1, v33", ["v33"], ["v35"])
            V("v_and_b32 v36, 7, v35", ["v35"], ["v36"])
            V("v_xor_b32 v36, v34, v36", ["v34", "v36"], ["v36"])
            V("v_lshlrev_b32 v36, 4, v36", ["v36"], ["v36"])
            V("v_mul_lo_u32 v37, v33, s82", ["v33", "s82"], ["v37"])
            V("v_add_u32 v36, v36, v37", ["v36", "v37"], ["v36"])
            V(f"v_subrev_u32 v{vOK + j}, {j * 1024}, v36", ["v36"], [f"v{vOK + j}"])
            V("v_and_b32 v36, 3, v35", ["v35"], ["v36"])
            V("v_lshlrev_b32 v36, 1, v36", ["v36"], ["v36"])
            V("v_xor_b32 v36, v34, v36", ["v34", "v36"], ["v36"])
            V("v_lshlrev_b32 v36, 4, v36", ["v36"], ["v36"])
            V("v_add_u32 v36, v36, v37", ["v36", "v37"], ["v36"])
            V(f"v_subrev_u32 v{vOV + j}, {j * 1024}, v36", ["v36"], [f"v{vOV + j}"])
            V("v_and_b32 v36, 1, v35", ["v35"], ["v36"])
            V("v_lshrrev_b32 v38, 1, v35", ["v35"], ["v38"])
            V("v_and_b32 v38, 2, v38", ["v38"], ["v38"])
            V("v_or_b32 v36, v36, v38", ["v36", "v38"], ["v36"])
            V("v_lshlrev_b32 v36, 1, v36", ["v36"], ["v36"])
            V("v_xor_b32 v36, v34, v36", ["v34", "v36"], ["v36"])
            V("v_lshlrev_b32 v36, 4, v36", ["v36"], ["v36"])
            V("v_mul_lo_u32 v37, v33, s83", ["v33", "s83"], ["v37"])
            V("v_add_u32 v36, v36, v37", ["v36", "v37"], ["v36"])
            V(f"v_subrev_u32 v{vOW + j}, {j * 1024}, v36", ["v36"], [f"v{vOW + j}"])
            V("v_lshrrev_b32 v33, 2, v32", ["v32"], ["v33"])
            V("v_and_b32 v34, 3, v32", ["v32"], ["v34"])
            V("v_lshrrev_b32 v36, 2, v33", ["v33"], ["v36"])
            V("v_and_b32 v36, 2, v36", ["v36"], ["v36"])
            V("v_xor_b32 v36, v34, v36", ["v34", "v36"], ["v36"])
            V("v_lshlrev_b32 v36, 4, v36", ["v36"], ["v36"])
            V("v_mul_lo_u32 v37, v33, s84", ["v33", "s84"], ["v37"])
            V("v_add_u32 v36, v36, v37", ["v36", "v37"], ["v36"])
            V(f"v_subrev_u32 v{vOX + j}, {j * 1024}, v36", ["v36"], [f"v{vOX + j}"])
        s += self.set_stream_xw()
        a(salu(f"s_movk_i32 s{sWnext}, 384", [], [f"s{sWnext}"]))
        for t in range(4):
            s += flat(self.dma_tile("A", self.nt_q))
            s += flat(self.dma_tile("B", self.nt_q))
        V("v_and_b32 v32, 15, v0", ["v0"], ["v32"])
        V("v_lshrrev_b32 v33, 4, v0", ["v0"], ["v33"])
        V("v_bfe_u32 v34, v0, 2, 2", ["v0"], ["v34"])
        V("v_and_b32 v35, 3, v0", ["v0"], ["v35"])
        V("v_lshrrev_b32 v36, 1, v32", ["v32"], ["v36"])
        V("v_mul_lo_u32 v37, v32, s82", ["v32", "s82"], ["v37"])
        V(f"v_add_u32 v37, s{sBK}, v37", ["v37", f"s{sBK}"], ["v37"])
        for e in range(2):
            V(f"v_add_u32 v38, {4 * e}, v33", ["v33"], ["v38"])
            V("v_xor_b32 v38, v38, v36", ["v38", "v36"], ["v38"])
            V(f"v_lshl_add_u32 v{aK + e}, v38, 4, v37", ["v38", "v37"], [f"v{aK + e}"])
        V("v_lshl_add_u32 v36, v33, 2, v34", ["v33", "v34"], ["v36"])
        V("v_mul_lo_u32 v37, v36, s82", ["v36", "s82"], ["v37"])
        V("v_and_b32 v38, 1, v35", ["v35"], ["v38"])
        V("v_lshl_add_u32 v37, v38, 3, v37", ["v38", "v37"], ["v37"])
        V(f"v_add_u32 v37, s{sBV}, v37", ["v37", f"s{sBV}"], ["v37"])
        V("v_and_b32 v36, 6, v36", ["v36"], ["v36"])
        V("v_lshrrev_b32 v39, 1, v35", ["v35"], ["v39"])
        for e in range(4):
            V(f"v_add_u32 v38, {2 * e}, v39", ["v39"], ["v38"])
            V("v_xor_b32 v38, v38, v36", ["v38", "v36"], ["v38"])
            V(f"v_lshl_add_u32 v{aV + e}, v38, 4, v37", ["v38", "v37"], [f"v{aV + e}"])
        V("v_lshl_add_u32 v36, v33, 3, v34", ["v33", "v34"], ["v36"])
        V("v_mul_lo_u32 v37, v36, s82", ["v36", "s82"], ["v37"])
        V("v_and_b32 v38, 1, v35", ["v35"], ["v38"])
        V("v_lshl_add_u32 v37, v38, 3, v37", ["v38", "v37"], ["v37"])
        V(f"v_add_u32 v37, s{sBW}, v37", ["v37", f"s{sBW}"], ["v37"])
        V("v_and_b32 v36, 2, v34", ["v34"], ["v36"])
        V("v_and_b32 v38, 1, v33", ["v33"], ["v38"])
        V("v_lshl_or_b32 v36, v38, 2, v36", ["v38", "v36"], ["v36"])
        for e in range(4):
            V(f"v_add_u32 v38, {2 * e}, v39", ["v39"], ["v38"])
            V("v_xor_b32 v38, v38, v36", ["v38", "v36"], ["v38"])
            V(f"v_lshl_add_u32 v{aW + e}, v38, 4, v37", ["v38", "v37"], [f"v{aW + e}"])
        a(salu(f"s_mul_i32 s80, s{sWave}, {48 * 64}", [], ["s80"]))
        V("v_lshrrev_b32 v36, 2, v32", ["v32"], ["v36"])
        V("v_and_b32 v36, 2, v36", ["v36"], ["v36"])
        V("v_xor_b32 v36, v33, v36", ["v33", "v36"], ["v36"])
        V("v_lshlrev_b32 v36, 4, v36", ["v36"], ["v36"])
        V("v_lshl_add_u32 v36, v32, 6, v36", ["v32", "v36"], ["v36"])
        V(f"v_add_u32 v{aX}, s80, v36", ["v36", "s80"], [f"v{aX}"])
        V("v_mov_b32 v32, 0x3f803f80", [], ["v32"])
        for j in range(4):
            V(f"v_accvgpr_write_b32 a{aOnes + j}, v32", ["v32"], [f"a{aOnes + j}"])
        return s

    def item_start(self):
        s = []
        s.append(label("L_item"))
        s.append(vmwait(lambda inst: inst["item"] * TPI + 3))
        s.append(barrier())
        fx = lambda inst: inst["item"] * TPI + 0
        fw = lambda inst: inst["item"] * TPI + 1
        for n in range(3):
            s.append(self.rdX(0, n, fx))
        for f in range(self.D):
            s += self.rdW(f, f, fw)
        return s

    def q_body(self, first, name):
        D = self.D
        bb = []
        for f in range(24):
            mt = f % 12
            st = f // 12
            for n in range(3):
                c = None if (first and st == 0) else Qacc(mt, n)
                bb.append(mfma(Qacc(mt, n), Fr(f), XB(st, n), c, "v", "a", "a"))
        fl = []
        base = lambda inst: inst["item"] * TPI + 4 * inst["i"]
        pre = []
        if not first:
            pre.append(label(name))
            pre.append(salu(f"s_cmp_eq_u32 s{sCnt}, 2", [f"s{sCnt}"], ["scc"]))
            pre.append(I(f"s_cbranch_scc0 {name}_ns", "br", ["scc"]))
            for ins in self.set_stream_kv():
                ins.cond = lambda inst: inst["i"] == 8
                pre.append(ins)
            pre.append(label(f"{name}_ns"))
        last = lambda inst: inst["i"] == 9
        notlast = lambda inst: inst["i"] != 9
        for f in range(24):
            g = f + D
            pos = 3 * f
            if g < 12:
                fn = lambda inst: base(inst) + 1
                rds = self.rdW(g, g, fn)
            elif g < 24:
                fn = lambda inst: base(inst) + 3
                rds = self.rdW(g, g - 12, fn)
            else:
                fn = lambda inst: (None if last(inst) else base(inst) + 5)
                rds = self.rdW(g, g - 24, fn)
            fl.append((pos + 0.1, rds[0]))
            fl.append((pos + 1.1, rds[1]))
        fl.append((3 * (8 - D) + 0.2, self.adv(sBW, sDW)))
        for e in range(4):
            fl.append((3 * (8 + e - D) + 2.5, self.vadd(aW + e, sDW)))
        fl.append((3 * (20 - D) + 0.2, self.adv(sBW, sDW)))
        for e in range(4):
            fl.append((3 * (20 + e - D) + 2.5, self.vadd(aW + e, sDW)))
        fl.append((1.2, self.adv(sBX, sDX)))
        fl.append((2.6, self.vadd(aX, sDX)))
        fx1 = lambda inst: base(inst) + 2
        for n in range(3):
            fl.append((3 * (3 + n) + 2.2, self.rdX(1, n, fx1)))
        fl.append((3 * 8 + 1.2, self.adv(sBX, sDX)))
        fl.append((3 * 8 + 2.6, self.vadd(aX, sDX)))
        fx0 = lambda inst: (None if last(inst) else base(inst) + 4)
        bpos = 3 * (24 - D) - 0.5
        bar = []
        if not first:
            bar.append(salu(f"s_cmp_eq_u32 s{sCnt}, 1", [f"s{sCnt}"], ["scc"]))
            bar.append(I(f"s_cbranch_scc1 {name}_nb", "br", ["scc"]))
        bar.append(vmwait(lambda inst: base(inst) + 7, cond=notlast))
        bar.append(barrier(cond=notlast))
        if not first:
            bar.append(label(f"{name}_nb"))
        fl.append((bpos, Group(*bar)))
        for n in range(3):
            fl.append((3 * (24 - D) + 1.2 + n, self.rdX(0, n, fx0)))
        fl += self.dma_fill("ABAB", self.nt_q, 0, 3 * (24 - D) - 3)
        if first:
            z = list(range(0, 156))
            for i, r_ in enumerate(z):
                fl.append((i * 70 / len(z) + 0.7, valu(f"v_accvgpr_write_b32 a{r_}, 0", [], [f"a{r_}"])))
        body = pre + weave(bb, fl)
        if first:
            body.append(salu(f"s_mov_b32 s{sCnt}, 9", [], [f"s{sCnt}"]))
        else:
            body.append(salu(f"s_sub_u32 s{sCnt}, s{sCnt}, 1", [f"s{sCnt}"], [f"s{sCnt}", "scc"]))
            body.append(salu(f"s_cmp_lg_u32 s{sCnt}, 0", [f"s{sCnt}"], ["scc"]))
            body.append(I(f"s_cbranch_scc1 {name}", "br", ["scc"]))
        return body

    def conv_block(self):
        s = [nop(7)]
        s.append(valu(f"v_mov_b32 v32, {hex(f32bits(QSCALE))}", [], ["v32"]))
        s.append(valu(f"v_mov_b32 v33, v32", ["v32"], ["v33"]))
        for p in range(6):
            for n in range(3):
                g = G(p, n)
                for j in range(0, 8, 2):
                    s.append(valu(f"v_pk_mul_f32 v[{g + j}:{g + j + 1}], v[{g + j}:{g + j + 1}], v[32:33]",
                                  regs("v", g + j, 2) + ["v32", "v33"], regs("v", g + j, 2)))
            for n in range(3):
                g = G(p, n)
                for j in range(4):
                    s.append(valu(f"v_cvt_pk_bf16_f32 v{g + j}, v{g + 2 * j}, v{g + 2 * j + 1}",
                                  [f"v{g + 2 * j}", f"v{g + 2 * j + 1}"], [f"v{g + j}"]))
            for n in range(3):
                g = G(p, n)
                for j in range(2):
                    s.append(I(f"v_permlane32_swap_b32 v{g + j}, v{g + 2 + j}", "perm", [f"v{g + j}", f"v{g + 2 + j}"], [f"v{g + j}", f"v{g + 2 + j}"]))
            for n in range(3):
                g = G(p, n)
                for j in range(2):
                    s.append(I(f"v_permlane16_swap_b32 v{g + j}, v{g + 2 + j}", "perm", [f"v{g + j}", f"v{g + 2 + j}"], [f"v{g + j}", f"v{g + 2 + j}"]))
        return s

    def exp_cvt(self, mt, n, par):
        sr = Sreg(mt, n)
        pr = Preg(par, n) + 2 * mt
        e = [trans(f"v_exp_f32 v{sr + j}, v{sr + j}", [f"v{sr + j}"], [f"v{sr + j}"]) for j in range(4)]
        c = [valu(f"v_cvt_pk_bf16_f32 v{pr + j}, v{sr + 2 * j}, v{sr + 2 * j + 1}", [f"v{sr + 2 * j}", f"v{sr + 2 * j + 1}"], [f"v{pr + j}"]) for j in range(2)]
        return e, c

    def att_prologue(self):
        D = self.D
        ib = lambda inst: inst["item"] * TPI + 40
        s = []
        s.append(vmwait(lambda inst: ib(inst)))
        s.append(barrier())
        fk0 = lambda inst: ib(inst)
        fk1 = lambda inst: ib(inst) + 2
        for f in range(D):
            s += self.rdK(f, f, fk0)
        bb = []
        for f in range(12):
            mt, ks = divmod(f, 6)
            for n in range(3):
                c = None if ks == 0 else Sreg(mt, n)
                bb.append(mfma(Sreg(mt, n), Fr(f), Qf(ks, n), c, "v", "a", "v"))
        fl = []
        for f in range(12):
            g = f + D
            if g < 12:
                fl.append((3 * f + 0.1, self.rdK(g, g, fk0)[0]))
            else:
                fl.append((3 * f + 0.1, self.rdK(g, g - 12, fk1)[0]))
        fl.append((3 * (10 - D) - 1.5, self.adv(sBK, sDK)))
        fl.append((3 * (10 - D) + 1.5, self.vadd(aK + 0, sDK)))
        fl.append((3 * (11 - D) + 1.5, self.vadd(aK + 1, sDK)))
        fl.append((3 * (12 - D) - 0.5, Group(vmwait(lambda inst: ib(inst) + 2), barrier())))
        fl += self.dma_fill("AB", self.nt_a, 0, 3 * (12 - D) - 3)
        s += weave(bb, fl)
        s.append(nop(7))
        t = vT
        for n in range(3):
            a0, a1 = Sreg(0, n), Sreg(1, n)
            s.append(valu(f"v_max3_f32 v{t + n}, v{a0}, v{a0 + 1}, v{a0 + 2}", regs("v", a0, 3), [f"v{t + n}"]))
            s.append(valu(f"v_max3_f32 v{t + 4 + n}, v{a0 + 3}, v{a1}, v{a1 + 1}", [f"v{a0 + 3}", f"v{a1}", f"v{a1 + 1}"], [f"v{t + 4 + n}"]))
        for n in range(3):
            a1 = Sreg(1, n)
            s.append(valu(f"v_max3_f32 v{t + n}, v{t + n}, v{a1 + 2}, v{a1 + 3}", [f"v{t + n}", f"v{a1 + 2}", f"v{a1 + 3}"], [f"v{t + n}"]))
        for n in range(3):
            s.append(valu(f"v_max_f32 v{t + n}, v{t + n}, v{t + 4 + n}", [f"v{t + n}", f"v{t + 4 + n}"], [f"v{t + n}"]))
        for swap in ("v_permlane16_swap_b32", "v_permlane32_swap_b32"):
            for n in range(3):
                s.append(valu(f"v_mov_b32 v{t + 4 + n}, v{t + n}", [f"v{t + n}"], [f"v{t + 4 + n}"]))
            s.append(nop(1))
            for n in range(3):
                s.append(I(f"{swap} v{t + n}, v{t + 4 + n}", "perm", [f"v{t + n}", f"v{t + 4 + n}"], [f"v{t + n}", f"v{t + 4 + n}"]))
            for n in range(3):
                s.append(valu(f"v_max_f32 v{t + n}, v{t + n}, v{t + 4 + n}", [f"v{t + n}", f"v{t + 4 + n}"], [f"v{t + n}"]))
        for n in range(3):
            for j in range(4):
                s.append(valu(f"v_sub_f32 v{NM(n) + j}, 0, v{t + n}", [f"v{t + n}"], [f"v{NM(n) + j}"]))
        for n in range(3):
            for mt in range(2):
                for j in range(4):
                    r_ = Sreg(mt, n) + j
                    s.append(valu(f"v_add_f32 v{r_}, v{r_}, v{NM(n) + j}", [f"v{r_}", f"v{NM(n) + j}"], [f"v{r_}"]))
        es, cs = [], []
        for n in range(3):
            for mt in range(2):
                e, c = self.exp_cvt(mt, n, 0)
                es += e
                cs += c
        s += es + cs
        s.append(salu(f"s_mov_b32 s{sCnt}, 7", [], [f"s{sCnt}"]))
        return s

    def att_body(self, par, kind, name):
        D = self.D
        ib = lambda inst: inst["item"] * TPI + 40
        sidx = lambda inst: inst["s"]
        kidx = lambda inst, j: ib(inst) + 2 * j
        vidx = lambda inst, j: ib(inst) + 2 * j + 1
        bb = []
        frs = []
        if kind != "last":
            frs += [("K", j) for j in range(12)]
        frs += [("V", j) for j in range(12)]
        nf = len(frs)
        voff = nf - 12
        for f, (ty, j) in enumerate(frs):
            if ty == "K":
                mt, ks = divmod(j, 6)
                for n in range(3):
                    c = NM(n) if ks == 0 else Sreg(mt, n)
                    bb.append(mfma(Sreg(mt, n), Fr(f), Qf(ks, n), c, "v", "a", "v"))
            else:
                for n in range(3):
                    bb.append(mfma(Oacc(j, n), Fr(f), Preg(par, n), Oacc(j, n), "a", "a", "v"))
                if j == 5:
                    for n in range(3):
                        bb.append(mfma(aL + 4 * n, aOnes, Preg(par, n), aL + 4 * n, "a", "a", "v"))

        def P(f):
            return 3 * f + (3 if f > voff + 5 else 0)

        fl = []
        pre = []
        if kind == "loop":
            pre.append(label(name))
        if kind == "loop" and par == 1:
            pre.append(salu(f"s_cmp_eq_u32 s{sCnt}, 2", [f"s{sCnt}"], ["scc"]))
            pre.append(I(f"s_cbranch_scc0 {name}_ns", "br", ["scc"]))
            sw = self.set_stream_xw()
            sw.append(salu(f"s_cmp_eq_u32 s{sItem}, 0", [f"s{sItem}"], ["scc"]))
            sw.append(salu(f"s_cselect_b32 s{S_A + 2}, s{S_A + 2}, 0", ["scc", f"s{S_A + 2}"], [f"s{S_A + 2}"]))
            sw.append(salu(f"s_cselect_b32 s{S_B + 2}, s{S_B + 2}, 0", ["scc", f"s{S_B + 2}"], [f"s{S_B + 2}"]))
            for ins in sw:
                ins.cond = lambda inst: inst["s"] == 11
                pre.append(ins)
            pre.append(label(f"{name}_ns"))
        for f in range(nf):
            g = f + D
            if g < nf:
                ty, j = frs[g]
                if ty == "K":
                    fl.append((P(f) + 0.1, self.rdK(g, j, lambda inst: kidx(inst, sidx(inst) + 1))[0]))
                else:
                    r2 = self.rdV(g, j, lambda inst: vidx(inst, sidx(inst)))
                    fl.append((P(f) + 0.1, r2[0]))
                    fl.append((P(f) + 1.1, r2[1]))
            else:
                j = g - nf
                if kind == "loop":
                    fl.append((P(f) + 0.1, self.rdK(g, j, lambda inst: kidx(inst, sidx(inst) + 2))[0]))
                elif kind == "b14":
                    r2 = self.rdV(g, j, lambda inst: vidx(inst, 15))
                    fl.append((P(f) + 0.1, r2[0]))
                    fl.append((P(f) + 1.1, r2[1]))
        if kind != "last":
            if kind == "loop":
                fl.append((P(9) + 1.3, self.adv(sBK, sDK)))
                fl.append((P(10) + 1.6, self.vadd(aK + 0, sDK)))
                fl.append((P(11) + 1.6, self.vadd(aK + 1, sDK)))
            fl.append((P(13) + 1.3, self.adv(sBV, sDV)))
            for e in range(4):
                fl.append((P(20 + e - D) + 2.5, self.vadd(aV + e, sDV)))
            bpos = P(nf - D) - 0.5
            if kind == "loop":
                need = lambda inst: kidx(inst, sidx(inst) + 2)
            else:
                need = lambda inst: vidx(inst, 15)
            fl.append((bpos, Group(vmwait(need), barrier())))
            fl += self.dma_fill("AB", self.nt_a, 0, P(nf - D) - 4)
            seq = []
            for mt in range(2):
                ee, cc = [], []
                for n in range(3):
                    e, c = self.exp_cvt(mt, n, 1 - par)
                    ee.append(e)
                    cc.append(c)
                lst = []
                for n in range(3):
                    lst += ee[n]
                    if n > 0:
                        lst += cc[n - 1]
                lst += cc[2]
                seq.append(lst)
            n_mf = len(bb)
            lo0, hi0 = P(8) + 1, P(15)
            lo1, hi1 = P(15), n_mf - 1.5
            for lst, lo, hi in ((seq[0], lo0, hi0), (seq[1], lo1, hi1)):
                for i, ins in enumerate(lst):
                    fl.append((lo + (hi - lo) * i / len(lst) + 0.8, ins))
        body = pre + weave(bb, fl)
        if kind == "loop" and par == 1:
            body.append(salu(f"s_sub_u32 s{sCnt}, s{sCnt}, 1", [f"s{sCnt}"], [f"s{sCnt}", "scc"]))
            body.append(salu(f"s_cmp_lg_u32 s{sCnt}, 0", [f"s{sCnt}"], ["scc"]))
            body.append(I(f"s_cbranch_scc1 L_ae", "br", ["scc"]))
        return body

    def epilogue(self):
        s = [nop(7)]
        t = vT
        for n in range(3):
            s.append(valu(f"v_accvgpr_read_b32 v{t + n}, a{aL + 4 * n}", [f"a{aL + 4 * n}"], [f"v{t + n}"]))
        for n in range(3):
            s.append(trans(f"v_rcp_f32 v{t + 4 + 2 * n}, v{t + n}", [f"v{t + n}"], [f"v{t + 4 + 2 * n}"]))
        s.append(nop(0))
        for n in range(3):
            s.append(valu(f"v_mov_b32 v{t + 5 + 2 * n}, v{t + 4 + 2 * n}", [f"v{t + 4 + 2 * n}"], [f"v{t + 5 + 2 * n}"]))
        k = 0
        for n in range(3):
            for p in range(6):
                tb = t + 16 + 12 * (k % 4)
                k += 1
                for h in range(2):
                    for j in range(4):
                        src = Oacc(2 * p + h, n) + j
                        s.append(valu(f"v_accvgpr_read_b32 v{tb + 4 * h + j}, a{src}", [f"a{src}"], [f"v{tb + 4 * h + j}"]))
                for j in range(0, 8, 2):
                    s.append(valu(f"v_pk_mul_f32 v[{tb + j}:{tb + j + 1}], v[{tb + j}:{tb + j + 1}], v[{t + 4 + 2 * n}:{t + 5 + 2 * n}]",
                                  regs("v", tb + j, 2) + regs("v", t + 4 + 2 * n, 2), regs("v", tb + j, 2)))
                for j in range(4):
                    s.append(valu(f"v_cvt_pk_bf16_f32 v{tb + 8 + j}, v{tb + 2 * j}, v{tb + 2 * j + 1}",
                                  [f"v{tb + 2 * j}", f"v{tb + 2 * j + 1}"], [f"v{tb + 8 + j}"]))
                s.append(salu(f"s_add_u32 s{sT0}, s{sOo}, {n * 196608 + p * 1024}", [f"s{sOo}"], [f"s{sT0}", "scc"]))
                s.append(I(f"buffer_store_dwordx4 v[{tb + 8}:{tb + 11}], v{vLane16}, s[{S_O}:{S_O + 3}], s{sT0} offen",
                           "vst", regs("v", tb + 8, 4) + [f"v{vLane16}", f"s{sT0}"] + regs("s", S_O, 4), []))
        s.append(salu(f"s_add_u32 s{sOo}, s{sOo}, {6 * 1024}", [f"s{sOo}"], [f"s{sOo}", "scc"]))
        s.append(salu(f"s_add_u32 s{sKVoff}, s{sKVoff}, 196608", [f"s{sKVoff}"], [f"s{sKVoff}", "scc"]))
        return s

    def build(self):
        P = self.P
        P.add("init", self.init_block())
        P.add("istart", self.item_start())
        P.add("q0", self.q_body(True, "L_q0"))
        P.add("ql", self.q_body(False, "L_ql"))
        conv = self.conv_block()
        P.add("conv", conv)
        P.add("ap", self.att_prologue())
        P.add("ae", self.att_body(0, "loop", "L_ae"))
        P.add("ao", self.att_body(1, "loop", "L_ao"))
        P.add("a14", self.att_body(0, "b14", "L_a14"))
        P.add("a15", self.att_body(1, "last", "L_a15"))
        ep = self.epilogue()
        fx = []
        for base, delta, n, addr, cnt in ((sBX, sDX, 32, aX, 1), (sBW, sDW, 32, aW, 4), (sBK, sDK, 42, aK, 2), (sBV, sDV, 42, aV, 4)):
            fx += self.adv_n(base, delta, n)
            for e in range(cnt):
                fx.append(self.vadd(addr + e, delta))
        fx.append(salu(f"s_add_u32 s{sItem}, s{sItem}, 1", [f"s{sItem}"], [f"s{sItem}", "scc"]))
        fx.append(salu(f"s_cmp_lt_u32 s{sItem}, 2", [f"s{sItem}"], ["scc"]))
        fx.append(I("s_cbranch_scc1 L_item", "br", ["scc"]))
        fx.append(label("L_exit1"))
        fx.append(I("s_endpgm", "end"))
        P.add("ep", ep + fx)
        tr = [("init", {"item": 0})]
        for item in range(2):
            tr.append(("istart", {"item": item}))
            tr.append(("q0", {"item": item, "i": 0}))
            for i in range(1, 10):
                tr.append(("ql", {"item": item, "i": i}))
            tr.append(("conv", {"item": item}))
            tr.append(("ap", {"item": item}))
            for s_ in range(0, 14, 2):
                tr.append(("ae", {"item": item, "s": s_}))
                tr.append(("ao", {"item": item, "s": s_ + 1}))
            tr.append(("a14", {"item": item, "s": 14}))
            tr.append(("a15", {"item": item, "s": 15}))
            tr.append(("ep", {"item": item}))
        P.trace = tr
        P.lgkm_pass()
        P.lgkm_prune()
        n = P.vm_pass(NSLOT)
        P.hazard_check()
        return P


def f32bits(x):
    import struct
    return struct.unpack("<I", struct.pack("<f", x))[0]


if __name__ == "__main__":
    k = K1()
    P = k.build()
    P.stats()
```

```python
from fw import *

NS = 8
TS = 5120
WR = NS * TS
L = 5
S_O, S_W, S_Y = 4, 8, 12
sKo, sKw, sWb, sIt, sWave, sT0 = 16, 17, 18, 19, 20, 21
vBo = 2
vWo = 8
vAr = 13
vT = 16
BB = 64
AF = 120
RF = 5
RS = 336


def acc(mt, n):
    return 4 * (mt * 6 + n)


def Bf(j, n):
    return BB + 24 * (j % NS) + 4 * n


def Af(f):
    return AF + 4 * (f % RF)


class K2:
    def __init__(self, nt_o="", nt_w="", D=2):
        self.nt_o, self.nt_w, self.D = nt_o, nt_w, D
        self.P = Program()

    def loads(self, jj):
        out = []
        sl = jj % NS
        out.append(salu(f"s_add_u32 m0, s{sWb}, {sl * TS}", [f"s{sWb}"], ["m0", "scc"]))
        for p in range(5):
            o = f" offset:{p * 1024}" if 0 < p < 4 else ""
            if p == 4:
                out.append(Group(salu(f"s_add_u32 m0, s{sWb}, {sl * TS + 4096}", [f"s{sWb}"], ["m0", "scc"]), nop(0)))
            out.append(I(f"buffer_load_dwordx4 v{vWo + p}, s[{S_W}:{S_W + 3}], s{sKw} offen{o} {self.nt_w} lds".replace("  ", " "),
                         "dma", [f"v{vWo + p}", "m0", f"s{sKw}"] + regs("s", S_W, 4), [], tag=("dma", p, 11)))
        for n in range(6):
            b = Bf(jj, n)
            out.append(I(f"buffer_load_dwordx4 v[{b}:{b + 3}], v{vBo + n}, s[{S_O}:{S_O + 3}], s{sKo} offen {self.nt_o}".rstrip(),
                         "dma", [f"v{vBo + n}", f"s{sKo}"] + regs("s", S_O, 4), regs("v", b, 4), tag=("dma", 5 + n, 11)))
        out.append(Group(salu(f"s_add_u32 s{sKw}, s{sKw}, 40960", [f"s{sKw}"], [f"s{sKw}", "scc"]),
                         salu(f"s_add_u32 s{sKo}, s{sKo}, 1024", [f"s{sKo}"], [f"s{sKo}", "scc"])))
        return out

    def rdA(self, f, jj, mt, idxfn):
        sl = jj % NS
        off = sl * TS + mt * 32
        return [ds_read_tr("a", Af(f), vAr, off, tag=("rd", idxfn)),
                ds_read_tr("a", Af(f) + 2, vAr, off + 2560, tag=("rd", idxfn))]

    def init_block(self):
        s = []
        a = s.append

        def V(t, r, w):
            a(valu(t, r, w))
        a(salu("s_cmp_ge_u32 s2, 256", ["s2"], ["scc"]))
        a(I("s_cbranch_scc1 L_exit2", "br", ["scc"]))
        a(I("s_load_dwordx2 s[24:25], s[0:1], 32", "smem", [], regs("s", 24, 2)))
        a(I("s_load_dwordx2 s[26:27], s[0:1], 72", "smem", [], regs("s", 26, 2)))
        a(I("s_load_dwordx2 s[28:29], s[0:1], 80", "smem", [], regs("s", 28, 2)))
        a(I("s_load_dwordx2 s[30:31], s[0:1], 96", "smem", [], regs("s", 30, 2)))
        V("v_lshrrev_b32 v16, 6, v0", ["v0"], ["v16"])
        V("v_mov_b32 v15, v0", ["v0"], ["v15"])
        V("v_and_b32 v0, 63, v0", ["v0"], ["v0"])
        a(I(f"v_readfirstlane_b32 s{sWave}, v16", "rfl", ["v16"], [f"s{sWave}"]))
        a(salu("s_and_b32 s32, s2, 7", ["s2"], ["s32"]))
        a(salu("s_lshr_b32 s33, s2, 3", ["s2"], ["s33"]))
        a(salu("s_lshr_b32 s34, s32, 2", [], ["s34"]))
        a(salu("s_and_b32 s35, s32, 3", [], ["s35"]))
        a(salu("s_and_b32 s36, s33, 3", [], ["s36"]))
        a(salu("s_lshr_b32 s37, s33, 2", [], ["s37"]))
        a(salu("s_lshl_b32 s35, s35, 2", [], ["s35"]))
        a(salu("s_add_u32 s35, s35, s36", [], ["s35"]))
        a(I("s_waitcnt lgkmcnt(0)", "lgk0"))
        a(salu("s_cmp_eq_u32 s34, 0", [], ["scc"]))
        a(salu("s_cselect_b64 s[24:25], s[24:25], s[26:27]", ["scc"], ["s24", "s25"]))
        a(salu("s_mul_i32 s38, s37, 160", [], ["s38"]))
        a(salu(f"s_mul_i32 s39, s{sWave}, {48 * 32 * 1280}", [f"s{sWave}"], ["s39"]))
        a(salu("s_add_u32 s38, s38, s39", [], ["s38"]))
        a(salu(f"s_add_u32 s{S_W}, s24, s38", [], [f"s{S_W}", "scc"]))
        a(salu(f"s_addc_u32 s{S_W + 1}, s25, 0", ["scc"], [f"s{S_W + 1}"]))
        a(salu(f"s_sub_u32 s{S_W + 2}, {6144 * 1280}, s38", [], [f"s{S_W + 2}"]))
        a(salu(f"s_mov_b32 s{S_W + 3}, 0x20000", [], [f"s{S_W + 3}"]))
        a(salu("s_mul_i32 s38, s34, 96", [], ["s38"]))
        a(salu("s_mul_i32 s39, s35, 6", [], ["s39"]))
        a(salu("s_add_u32 s38, s38, s39", [], ["s38"]))
        a(salu("s_mul_i32 s38, s38, 192", [], ["s38"]))
        a(salu(f"s_mul_i32 s39, s{sWave}, 48", [f"s{sWave}"], ["s39"]))
        a(salu("s_add_u32 s38, s38, s39", [], ["s38"]))
        a(salu("s_lshl_b32 s38, s38, 10", [], ["s38"]))
        a(salu(f"s_add_u32 s{S_O}, s30, s38", [], [f"s{S_O}", "scc"]))
        a(salu(f"s_addc_u32 s{S_O + 1}, s31, 0", ["scc"], [f"s{S_O + 1}"]))
        a(salu(f"s_sub_u32 s{S_O + 2}, {2 * 96 * 192 * 1024}, s38", [], [f"s{S_O + 2}"]))
        a(salu(f"s_mov_b32 s{S_O + 3}, 0x20000", [], [f"s{S_O + 3}"]))
        a(salu(f"s_mul_i32 s38, s35, {96 * 2560}", [], ["s38"]))
        a(salu("s_mul_i32 s39, s34, 1280", [], ["s39"]))
        a(salu("s_add_u32 s38, s38, s39", [], ["s38"]))
        a(salu("s_mul_i32 s39, s37, 160", [], ["s39"]))
        a(salu("s_add_u32 s38, s38, s39", [], ["s38"]))
        a(salu(f"s_add_u32 s{S_Y}, s28, s38", [], [f"s{S_Y}", "scc"]))
        a(salu(f"s_addc_u32 s{S_Y + 1}, s29, 0", ["scc"], [f"s{S_Y + 1}"]))
        a(salu(f"s_sub_u32 s{S_Y + 2}, {1536 * 2560}, s38", [], [f"s{S_Y + 2}"]))
        a(salu(f"s_mov_b32 s{S_Y + 3}, 0x20000", [], [f"s{S_Y + 3}"]))
        a(salu(f"s_mul_i32 s{sWb}, s{sWave}, {WR}", [f"s{sWave}"], [f"s{sWb}"]))
        a(salu(f"s_mov_b32 s{sKo}, 0", [], [f"s{sKo}"]))
        a(salu(f"s_mov_b32 s{sKw}, 0", [], [f"s{sKw}"]))
        V(f"v_lshlrev_b32 v{vBo}, 4, v0", ["v0"], [f"v{vBo}"])
        for n in range(1, 6):
            V(f"v_add_u32 v{vBo + n}, {n * 196608}, v{vBo}", [f"v{vBo}"], [f"v{vBo + n}"])
        a(salu("s_movk_i32 s40, 6554", [], ["s40"]))
        a(salu("s_movk_i32 s41, 1280", [], ["s41"]))
        for p in range(5):
            V(f"v_add_u32 v16, {64 * p}, v0", ["v0"], ["v16"])
            V("v_mul_lo_u32 v17, v16, s40", ["v16", "s40"], ["v17"])
            V("v_lshrrev_b32 v17, 16, v17", ["v17"], ["v17"])
            V("v_mul_u32_u24 v18, 10, v17", ["v17"], ["v18"])
            V("v_sub_u32 v18, v16, v18", ["v16", "v18"], ["v18"])
            V("v_mul_lo_u32 v17, v17, s41", ["v17", "s41"], ["v17"])
            V("v_lshl_add_u32 v17, v18, 4, v17", ["v18", "v17"], ["v17"])
            V(f"v_subrev_u32 v{vWo + p}, {p * 1024 if p < 4 else 0}, v17", ["v17"], [f"v{vWo + p}"])
        for j in range(L):
            ld = flat(self.loads(j))
            s += [ld[0], nop(0)] + ld[1:]
        V("v_lshrrev_b32 v16, 2, v0", ["v0"], ["v16"])
        V("v_mul_u32_u24 v16, 160, v16", ["v16"], ["v16"])
        V("v_and_b32 v17, 3, v0", ["v0"], ["v17"])
        V("v_lshl_add_u32 v16, v17, 3, v16", ["v16", "v17"], ["v16"])
        V(f"v_add_u32 v{vAr}, s{sWb}, v16", ["v16", f"s{sWb}"], [f"v{vAr}"])
        for r_ in range(120):
            V(f"v_accvgpr_write_b32 a{r_}, 0", [], [f"a{r_}"])
        a(salu(f"s_mov_b32 s{sIt}, 6", [], [f"s{sIt}"]))
        a(vmwait(lambda inst: 0))
        for f in range(self.D):
            s += self.rdA(f, 0, f, lambda inst: 0)
        return s

    def loop_body(self):
        D = self.D
        bb = []
        fl = []
        kb = lambda inst: inst["it"] * 8
        for jj in range(8):
            for mt in range(5):
                f = jj * 5 + mt
                for n in range(6):
                    bb.append(mfma(acc(mt, n), Af(f), Bf(jj, n), acc(mt, n), "a", "a", "v"))
        for f in range(40):
            g = f + D
            jj, mt = divmod(g, 5)
            if g < 40:
                fn = (lambda j_: (lambda inst: kb(inst) + j_))(jj)
            else:
                fn = (lambda j_: (lambda inst: (kb(inst) + j_) if inst["it"] < 5 else None))(jj)
            r2 = self.rdA(g, jj, mt, fn)
            if mt == 0:
                need = (lambda j_: (lambda inst: min(kb(inst) + j_, 47 + L)))(jj)
                fl.append((6 * f + 0.05, vmwait(need)))
            fl.append((6 * f + 0.1, r2[0]))
            fl.append((6 * f + 1.1, r2[1]))
        for jj in range(8):
            ld = self.loads(jj + L)
            n = len(ld)
            if jj == 3:
                fl.append((30 * jj + 0.01, Group(
                    salu(f"s_cmp_eq_u32 s{sIt}, 1", [f"s{sIt}"], ["scc"]),
                    salu(f"s_cselect_b32 s{S_O + 2}, 0, s{S_O + 2}", ["scc"], [f"s{S_O + 2}"]),
                    salu(f"s_cselect_b32 s{S_W + 2}, 0, s{S_W + 2}", ["scc"], [f"s{S_W + 2}"]))))
            for i, it in enumerate(ld):
                fl.append((30 * jj + 2.3 + i * 27 / n, it))
        body = [label("L_k2")] + weave(bb, fl)
        body.append(salu(f"s_sub_u32 s{sIt}, s{sIt}, 1", [f"s{sIt}"], [f"s{sIt}", "scc"]))
        body.append(salu(f"s_cmp_lg_u32 s{sIt}, 0", [f"s{sIt}"], ["scc"]))
        body.append(I("s_cbranch_scc1 L_k2", "br", ["scc"]))
        return body

    def final(self):
        s = []
        a = s.append

        def V(t, r, w):
            a(valu(t, r, w))
        a(vmwait(lambda inst: "all"))
        a(I("s_waitcnt lgkmcnt(0)", "lgk0"))
        a(nop(7))
        V("v_and_b32 v16, 15, v0", ["v0"], ["v16"])
        V("v_lshrrev_b32 v17, 4, v0", ["v0"], ["v17"])
        V(f"v_mul_u32_u24 v16, {RS}, v16", ["v16"], ["v16"])
        V("v_lshl_add_u32 v16, v17, 4, v16", ["v16", "v17"], ["v16"])
        V(f"v_add_u32 v16, s{sWb}, v16", ["v16", f"s{sWb}"], ["v16"])
        cnt = 0
        for n in range(6):
            for mt in range(5):
                a(ds_write_b128(16, "a", acc(mt, n), n * 16 * RS + mt * 64))
                cnt += 1
                if cnt % 12 == 0:
                    a(I("s_waitcnt lgkmcnt(0)", "lgk0"))
        a(I("s_waitcnt lgkmcnt(0)", "lgk0"))
        a(barrier())
        a(salu("s_movk_i32 s40, 6554", [], ["s40"]))
        a(salu("s_movk_i32 s41, 2560", [], ["s41"]))
        for r_ in range(4):
            V(f"v_add_u32 v16, {256 * r_}, v15", ["v15"], ["v16"])
            if r_ == 3:
                V("v_cmp_gt_u32 vcc, 960, v16", ["v16"], ["vcc"])
                V("v_min_u32 v16, 959, v16", ["v16"], ["v16"])
            V("v_mul_lo_u32 v17, v16, s40", ["v16", "s40"], ["v17"])
            V("v_lshrrev_b32 v17, 16, v17", ["v17"], ["v17"])
            V("v_mul_u32_u24 v18, 10, v17", ["v17"], ["v18"])
            V("v_sub_u32 v18, v16, v18", ["v16", "v18"], ["v18"])
            V(f"v_mul_u32_u24 v19, {RS}, v17", ["v17"], ["v19"])
            V("v_lshl_add_u32 v19, v18, 5, v19", ["v18", "v19"], ["v19"])
            V("v_mul_lo_u32 v20, v17, s41", ["v17", "s41"], ["v20"])
            V("v_lshl_add_u32 v20, v18, 4, v20", ["v18", "v20"], ["v20"])
            if r_ == 3:
                V("v_mov_b32 v21, 0x7ffffff0", [], ["v21"])
                V("v_cndmask_b32 v20, v21, v20, vcc", ["v20", "v21", "vcc"], ["v20"])
            for w in range(4):
                if w * WR + 16 < 65536:
                    a(ds_read_b128("v", 24 + 8 * w, 19, w * WR))
                    a(ds_read_b128("v", 28 + 8 * w, 19, w * WR + 16))
                else:
                    V(f"v_add_u32 v22, {w * WR}, v19", ["v19"], ["v22"])
                    a(ds_read_b128("v", 24 + 8 * w, 22, 0))
                    a(ds_read_b128("v", 28 + 8 * w, 22, 16))
            for j in range(8):
                V(f"v_add_f32 v{24 + j}, v{24 + j}, v{32 + j}", [f"v{24 + j}", f"v{32 + j}"], [f"v{24 + j}"])
            for j in range(8):
                V(f"v_add_f32 v{40 + j}, v{40 + j}, v{48 + j}", [f"v{40 + j}", f"v{48 + j}"], [f"v{40 + j}"])
            for j in range(8):
                V(f"v_add_f32 v{24 + j}, v{24 + j}, v{40 + j}", [f"v{24 + j}", f"v{40 + j}"], [f"v{24 + j}"])
            for j in range(4):
                V(f"v_cvt_pk_bf16_f32 v{56 + j}, v{24 + 2 * j}, v{25 + 2 * j}", [f"v{24 + 2 * j}", f"v{25 + 2 * j}"], [f"v{56 + j}"])
            a(I(f"buffer_store_dwordx4 v[56:59], v20, s[{S_Y}:{S_Y + 3}], 0 offen", "vst", regs("v", 56, 4) + ["v20"] + regs("s", S_Y, 4), []))
            a(nop(1))
        a(label("L_exit2"))
        a(I("s_endpgm", "end"))
        return s

    def build(self):
        P = self.P
        P.add("init", self.init_block())
        P.add("loop", self.loop_body())
        P.add("final", self.final())
        tr = [("init", {})] + [("loop", {"it": i}) for i in range(6)] + [("final", {})]
        P.trace = tr
        P.lgkm_pass()
        P.lgkm_prune()
        P.vm_pass(NS, no_barrier=True)
        P.hazard_check()
        return P


if __name__ == "__main__":
    k = K2()
    P = k.build()
    P.stats()
```

```python
import sys, argparse
sys.path.insert(0, 'gen')
from k1 import K1
from k2 import K2
NAME = "concat_heads__mha_block_cached__gqa_block_cached__near_ridge"
HDR = open('cdna_kernels/%s.s.ref' % NAME).read().split('; Override launch geometry')[0]

def kd(name, vgpr, sgpr, accum):
    return f""".amdhsa_kernel {name}
  .amdhsa_next_free_vgpr {vgpr}
  .amdhsa_next_free_sgpr {sgpr}
  .amdhsa_accum_offset {accum}
  .amdhsa_group_segment_fixed_size 0
  .amdhsa_kernarg_size 104
  .amdhsa_user_sgpr_count 2
  .amdhsa_user_sgpr_kernarg_segment_ptr 1
  .amdhsa_system_sgpr_workgroup_id_x 1
.end_amdhsa_kernel
"""

def build(path, k1opts=None, k2opts=None, only=None):
    k1 = K1(**(k1opts or {})); P1 = k1.build()
    k2 = K2(**(k2opts or {})); P2 = k2.build()
    n1, n2 = "attn_kernel", "oproj_kernel"
    t = HDR
    t += "; Two launches: fused q-projection + attention (O fragments -> d_ws), then the output projection.\n"
    if only in (None, 1):
        t += f"; @launch kernel={n1} grid=(256,1,1) block=(256,1,1) lds=159744\n"
    if only in (None, 2):
        t += f"; @launch kernel={n2} grid=(256,1,1) block=(256,1,1) lds=163840\n"
    t += '.amdgcn_target "amdgcn-amd-amdhsa--gfx950"\n.text\n'
    for n, P in ((n1, P1), (n2, P2)):
        t += f".globl {n}\n.p2align 8\n.type {n},@function\n{n}:\n" + P.text()
    t += '.section .rodata,"a"\n.p2align 6\n' + kd(n1, 512, 96, 256) + ".p2align 6\n" + kd(n2, 400, 64, 256)
    open(path, "w").write(t)
    return t

if __name__ == "__main__":
    out = sys.argv[1] if len(sys.argv) > 1 else f"cdna_kernels/{NAME}.s"
    build(out)
    print("written", out)
```

```python
from asmgen import build
import json
def kern(name, nm, ndma, aux, bar, depth, rnd):
    b = f"""
    s_load_dwordx2 s[4:5], s[0:1], 0
    s_load_dwordx2 s[6:7], s[0:1], 8
    s_waitcnt lgkmcnt(0)
    s_mov_b32 s8, s4
    s_mov_b32 s9, s5
    s_mov_b32 s10, 0x20000000
    s_mov_b32 s11, 0x00020000
    s_mov_b32 s12, s6
    s_mov_b32 s13, s7
    s_mov_b32 s14, 0x1000000
    s_mov_b32 s15, 0x00020000
    v_lshrrev_b32 v3, 6, v0
    s_nop 0
    v_readfirstlane_b32 s29, v3
    v_and_b32 v0, 63, v0
    v_lshlrev_b32 v1, 4, v0
    s_mul_i32 s30, s2, {786432}
    s_mul_i32 s31, s29, 3072
    s_add_u32 s30, s30, s31
    s_mul_i32 s33, s29, 3072
"""
    for r in range(8, 64, 4):
        b += f"    buffer_load_dwordx4 v[{r}:{r+3}], v1, s[8:11], 0 offen offset:{(r*16)%4096}\n"
    b += "    s_waitcnt vmcnt(0)\n    s_barrier\n    s_memtime s[20:21]\n    s_memrealtime s[24:25]\n    s_waitcnt lgkmcnt(0)\n    s_mov_b32 s16, 32\n    s_mov_b32 s34, 0\n"
    b += f"L_{name}:\n"
    pos = [int((i+0.5)*nm/max(ndma,1)) for i in range(ndma)]
    j = 0
    for i in range(nm):
        a = 64 + 4*(i%36)
        b += f"    v_mfma_f32_16x16x32_bf16 v[{a}:{a+3}], v[{8+4*(i%7)}:{11+4*(i%7)}], v[{36+4*(i%6)}:{39+4*(i%6)}], v[{a}:{a+3}]\n"
        if i in pos:
            if j % 3 == 0:
                b += f"    s_add_u32 m0, s33, s34\n    s_add_u32 s34, s34, 12288\n    s_cmp_ge_u32 s34, 147456\n    s_cmov_b32 s34, 0\n"
            o = f" offset:{(j%3)*1024}" if j % 3 else ""
            b += f"    buffer_load_dwordx4 v1, s[8:11], s30 offen{o} {aux} lds\n"
            if j % 3 == 2: b += "    s_add_u32 s30, s30, 12288\n"
            j += 1
    b += f"    s_waitcnt vmcnt({depth})\n"
    if bar: b += "    s_barrier\n"
    b += f"    s_sub_u32 s16, s16, 1\n    s_cmp_lg_u32 s16, 0\n    s_cbranch_scc1 L_{name}\n"
    b += """
    s_waitcnt vmcnt(0)
    s_memtime s[22:23]
    s_memrealtime s[26:27]
    s_waitcnt lgkmcnt(0)
    s_lshl_b32 s17, s2, 4
    v_mov_b32 v3, s17
    v_mov_b32 v4, s20
    v_mov_b32 v5, s22
    v_mov_b32 v6, s24
    v_mov_b32 v7, s26
    v_cmp_eq_u32 vcc, 0, v0
    s_and_saveexec_b64 s[18:19], vcc
    s_cmp_lg_u32 s29, 0
    s_cbranch_scc1 L_e_""" + name + """
    buffer_store_dwordx4 v[4:7], v3, s[12:15], 0 offen
    s_waitcnt vmcnt(0)
L_e_""" + name + ":\n"
    return b
ks=[]; desc=[]
for (nm_, n, nd, aux, bar, dp) in [("m75",75,6,"nt",1,24),("m60",60,6,"nt",1,24),("m40",40,6,"nt",1,24),("m20",20,6,"nt",1,24),("m7",7,6,"nt",1,24),("m75_d48",75,6,"nt",1,48),("m75_d60",75,6,"nt",1,57),("m75_nobar",75,6,"nt",0,24),("m100",100,6,"nt",1,24)]:
    ks.append((nm_, kern(nm_, n, nd, aux, bar, dp, 0), 256, 48, 256)); desc.append(dict(name=nm_, nd=nd, nm=n))
build("mb13", ks, 2)
json.dump(desc, open("mb13.json","w"))
```
